```python
import torch

def _softmax(x, axis=-1):
    return torch.softmax(x, dim=axis)
def _gelu(x):
    return torch.nn.functional.gelu(x, approximate="tanh")
def _silu(x):
    return torch.nn.functional.silu(x)
def _sigmoid(x):
    return torch.sigmoid(x)
def _layernorm(x, axis=-1, eps=1e-5):
    m = x.mean(dim=axis, keepdim=True)
    v = x.var(dim=axis, keepdim=True, unbiased=False)
    return (x - m) / torch.sqrt(v + eps)
def _scatter_add(tgt, idx, src, axis=0):
    return tgt.clone().index_add_(axis, idx, src)
def _segment_sum(src, seg, n):
    out = torch.zeros((n,) + src.shape[1:], dtype=src.dtype)
    return out.index_add_(0, seg, src)
def _pad(x, pw):
    flat = tuple(v for pair in reversed(pw) for v in pair)
    return torch.nn.functional.pad(x, flat)

kernel_name = 'parallel_sum__ssm_conv_s4d__dense_activation_silu__prompt'

def setup_inputs():

    _w = (lambda a: (lambda t: t.to(torch.bfloat16) if t.is_floating_point() else t)(torch.as_tensor(a)))
    def _A_setup():
        Bsz, L, D, N = 1, 2048, 576, 128
        return {
            "u": _w((lambda *s: torch.randn(*s, dtype=torch.bfloat16) * 0.05)(Bsz, L, D)),
            "log_A_real": _w((lambda *s: torch.randn(*s, dtype=torch.bfloat16) * 3.2)(D, N) * 0.5),
            "A_imag": _w((lambda *s: torch.randn(*s, dtype=torch.bfloat16) * 0.05)(D, N) * 3.14),
            "C_real": _w((lambda *s: torch.randn(*s, dtype=torch.bfloat16) * 0.2)(D, N) / N ** 0.5),
            "C_imag": _w((lambda *s: torch.randn(*s, dtype=torch.bfloat16) * 0.2)(D, N) / N ** 0.5),
            "log_dt": _w((lambda *s: torch.randn(*s, dtype=torch.bfloat16) * 0.05)(D) * 0.5 - 4.0),
            "D_skip": _w((lambda *s: torch.randn(*s, dtype=torch.bfloat16) * 0.05)(D)),
        }
    _A_in = _A_setup()

    def _B_setup():
        B, S, D, F = 1, 2048, 576, 4608
        return {
            "x": _w((lambda *s: torch.randn(*s, dtype=torch.bfloat16) * 0.05)(B, S, D)),
            "w1": _w((lambda *s: torch.randn(*s, dtype=torch.bfloat16) * 0.8)(D, F) * (D ** -0.5)),
            "w2": _w((lambda *s: torch.randn(*s, dtype=torch.bfloat16) * 0.2)(F, D) * (F ** -0.5)),
        }
    _B_in = _B_setup()

    return {
        "A_u": _A_in["u"],
        "A_log_A_real": _A_in["log_A_real"],
        "A_A_imag": _A_in["A_imag"],
        "A_C_real": _A_in["C_real"],
        "A_C_imag": _A_in["C_imag"],
        "A_log_dt": _A_in["log_dt"],
        "A_D_skip": _A_in["D_skip"],
        "B_x": _B_in["x"],
        "B_w1": _B_in["w1"],
        "B_w2": _B_in["w2"],
    }

def reference(A_u, A_log_A_real, A_A_imag, A_C_real, A_C_imag, A_log_dt, A_D_skip, B_x, B_w1, B_w2):
    def _A_ref(u, log_A_real, A_imag, C_real, C_imag, log_dt, D_skip):
        L = u.shape[1]
        dt = torch.exp(log_dt)
        A = -torch.exp(log_A_real) + 1j * A_imag
        C = (C_real + 1j * C_imag) * dt[:, None]
        pos = (lambda x, dt: x.to(dt))(torch.arange(L), log_dt.dtype)
        P = torch.exp((A * dt[:, None])[:, :, None] * pos[None, None, :])
        K = 2.0 * torch.einsum("dn,dnl->dl", C, P).real
        L2 = 2 * L
        u_t = (lambda x, *d: x.permute(*d))(u, 0, 2, 1)
        Kf = (lambda x, *a, **k: torch.fft.rfft(x.float(), *a, **k))(K, L2)
        Uf = (lambda x, *a, **k: torch.fft.rfft(x.float(), *a, **k))(u_t, L2)
        y = (lambda x, *a, **k: torch.fft.irfft(x, *a, **k).to(torch.bfloat16))(Uf * Kf[None, :, :], L2)[:, :, :L]
        y = (lambda x, *d: x.permute(*d))(y, 0, 2, 1)
        return y + u * D_skip[None, None, :]

    def _B_ref(x, w1, w2):
        h = torch.einsum("bsd,df->bsf", x, w1)
        h = _silu(h)
        out = torch.einsum("bsf,fd->bsd", h, w2)
        return out

    x = A_u
    xn = _layernorm(x, axis=-1)
    return x + _A_ref(xn, A_log_A_real, A_A_imag, A_C_real, A_C_imag, A_log_dt, A_D_skip) + _B_ref(xn, B_w1, B_w2)
```

```python
import re, subprocess, os
LLVM = "bin"

class Prog:
    def __init__(self):
        self.l = []
        self.kernels = []
        self.vm = []
        self.lg = []
    def __call__(self, s):
        for x in s.strip("\n").split("\n"):
            x = x.strip()
            if x: self.l.append(x)
    def vmem(self, s, tag):
        self(s); self.vm.append(tag)
    def lds(self, s, tag):
        self(s); self.lg.append(tag)
    @staticmethod
    def _cnt(q, tags):
        if not isinstance(tags, (list, set)): tags = [tags]
        idx = [i for i, t in enumerate(q) if t in tags]
        if not idx: return None
        return len(q) - 1 - max(idx)
    def wait_str(self, vm=None, lg=None):
        parts = []
        if vm is not None:
            n = self._cnt(self.vm, vm)
            if n is not None:
                n2 = min(n, 63); parts.append(f"vmcnt({n2})"); self.vm = self.vm[len(self.vm)-n2:] if n2 else []
        if lg is not None:
            n = self._cnt(self.lg, lg)
            if n is not None:
                n2 = min(n, 15); parts.append(f"lgkmcnt({n2})"); self.lg = self.lg[len(self.lg)-n2:] if n2 else []
        return ("s_waitcnt " + " ".join(parts)) if parts else None
    def wait(self, vm=None, lg=None):
        w = self.wait_str(vm, lg)
        if w: self(w)
    def waitall(self, vm=True, lg=True):
        p = []
        if vm: p.append("vmcnt(0)"); self.vm = []
        if lg: p.append("lgkmcnt(0)"); self.lg = []
        self("s_waitcnt " + " ".join(p))
    def kernel_begin(self, name):
        self(f".text\n.globl {name}\n.p2align 8\n.type {name},@function\n{name}:")
        self.vm = []; self.lg = []
    def kernel_desc(self, name, vgpr, sgpr=102, accum=None):
        if accum is None: accum = min(256, (vgpr + 3) // 4 * 4)
        self.kernels.append(f""".amdhsa_kernel {name}
  .amdhsa_next_free_vgpr {vgpr}
  .amdhsa_next_free_sgpr {sgpr}
  .amdhsa_accum_offset {accum}
  .amdhsa_group_segment_fixed_size 0
  .amdhsa_kernarg_size 104
  .amdhsa_user_sgpr_count 2
  .amdhsa_user_sgpr_kernarg_segment_ptr 1
  .amdhsa_system_sgpr_workgroup_id_x 1
  .amdhsa_float_denorm_mode_32 3
.end_amdhsa_kernel""")
    def text(self, header):
        body = []
        for x in self.l:
            body.append(x if (x.endswith(":") or x.startswith(".")) else "    " + x)
        out = header.rstrip("\n") + "\n.amdgcn_target \"amdgcn-amd-amdhsa--gfx950\"\n" + "\n".join(body) + "\n"
        out += '.section .rodata,"a"\n'
        for k in self.kernels: out += ".p2align 6\n" + k + "\n"
        return out

_reg = re.compile(r"(?<![\w])(-?)(?:abs\()?([vas])(?:\[(\d+):(\d+)\]|(\d+))")
def regs_of(op):
    out = set()
    for m in _reg.finditer(op):
        k = m.group(2)
        if m.group(3) is not None: out |= {(k, i) for i in range(int(m.group(3)), int(m.group(4)) + 1)}
        else: out.add((k, int(m.group(5))))
    if re.search(r"\bvcc\b", op): out |= {("s", "vcc")}
    if re.search(r"\bexec\b", op): out |= {("s", "exec")}
    if re.search(r"\bm0\b", op): out |= {("s", "m0")}
    return out
TRANS = ("v_exp_f32", "v_log_f32", "v_rcp_f32", "v_rsq_f32", "v_sqrt_f32", "v_sin_f32", "v_cos_f32", "v_rcp_iflag")
def parse(line):
    line = line.split(";")[0].strip()
    if not line or line.endswith(":") or line.startswith("."): return None
    sp = line.split(None, 1); mn = sp[0]; rest = sp[1] if len(sp) > 1 else ""
    ops = [o.strip() for o in re.split(r",(?![^\[]*\])", rest)] if rest else []
    d = dict(mn=mn, line=line, W=set(), R=set(), cls="other", C=set())
    if mn.startswith("v_mfma"):
        d["cls"] = "mfma"; d["W"] = regs_of(ops[0]); d["R"] = regs_of(ops[1]) | regs_of(ops[2]) | regs_of(ops[3]); d["C"] = regs_of(ops[3])
        d["AB"] = regs_of(ops[1]) | regs_of(ops[2])
        d["passes"] = 8 if "32x32" in mn else 4
    elif mn.startswith("v_"):
        d["cls"] = "valu"
        if mn.startswith("v_cmp"):
            d["W"] = regs_of(ops[0]); d["R"] = set().union(*[regs_of(o) for o in ops[1:]])
            if mn.startswith("v_cmpx"): d["W"].add(("s", "exec"))
        elif "permlane" in mn and "swap" in mn:
            d["W"] = regs_of(ops[0]) | regs_of(ops[1]); d["R"] = set(d["W"])
        elif mn.startswith(("v_add_co", "v_addc_co", "v_sub_co", "v_subb_co")):
            d["W"] = regs_of(ops[0]) | regs_of(ops[1]); d["R"] = set().union(*[regs_of(o) for o in ops[2:]])
        else:
            d["W"] = regs_of(ops[0]); d["R"] = set().union(set(), *[regs_of(o) for o in ops[1:]])
            if mn.startswith(("v_fmac", "v_dot2c", "v_writelane")) or "_dpp" in mn and False: d["R"] |= d["W"]
        d["trans"] = mn.startswith(TRANS); d["dpp"] = ("_dpp" in mn) or ("row_" in line) or ("quad_perm" in line)
        d["sdwa"] = "_sdwa" in mn
    elif mn.startswith("ds_"):
        d["cls"] = "ds"
        if "read" in mn or "permute" in mn or "swizzle" in mn:
            d["W"] = regs_of(ops[0]); d["R"] = set().union(set(), *[regs_of(o) for o in ops[1:]])
        else: d["R"] = set().union(*[regs_of(o) for o in ops])
    elif mn.startswith(("buffer_", "global_")):
        d["cls"] = "vmem"
        islds = bool(re.search(r"\blds\b", line)) or "_lds_" in mn
        if islds: d["R"] = set().union(*[regs_of(o) for o in ops]) | {("s", "m0")}; d["dma"] = True
        elif "load" in mn: d["W"] = regs_of(ops[0]); d["R"] = set().union(set(), *[regs_of(o) for o in ops[1:]])
        elif "store" in mn or "atomic" in mn:
            d["R"] = set().union(*[regs_of(o) for o in ops])
            if "x4" in mn or "x3" in mn: d["wide_data"] = regs_of(ops[0] if mn.startswith("buffer") else ops[1])
    elif mn.startswith("s_"):
        d["cls"] = "salu"
        if mn.startswith(("s_cmp", "s_waitcnt", "s_barrier", "s_nop", "s_cbranch", "s_branch", "s_endpgm", "s_setprio", "s_sleep", "s_bitcmp")):
            d["R"] = set().union(set(), *[regs_of(o) for o in ops]) if mn.startswith(("s_cmp", "s_bitcmp")) else set()
        else:
            d["W"] = regs_of(ops[0]); d["R"] = set().union(set(), *[regs_of(o) for o in ops[1:]])
            if "saveexec" in mn: d["W"].add(("s", "exec"))
        d["nop"] = (int(ops[0], 0) + 1) if mn == "s_nop" else 1
    return d
def isv(r): return r[0] in "va"
def check_hazards(lines, name=""):
    ins = [p for p in (parse(l) for l in lines) if p]
    errs = []
    for j, c in enumerate(ins):
        dist = 0
        for i in range(j - 1, max(-1, j - 24), -1):
            p = ins[i]
            need = 0; why = ""
            vW = {r for r in p["W"] if isv(r)}; sW = {r for r in p["W"] if r[0] == "s"}
            if p["cls"] == "valu":
                if c["cls"] == "mfma" and vW & c["R"]: need, why = 2, "valu->mfma"
                if c["cls"] == "valu":
                    if p.get("trans") and vW & c["R"] and not c.get("trans"): need, why = max(need, 1), "trans->valu"
                    if p.get("trans") and vW & c["R"] and c.get("trans"): pass
                    if c.get("dpp") and vW & c["R"]: need, why = max(need, 2), "valu->dpp"
                    if "permlane" in c["mn"] and vW & c["R"]: need, why = max(need, 2), "valu->permlane"
                    if c["mn"].startswith(("v_readfirstlane", "v_readlane")) and vW & c["R"]: need, why = max(need, 1), "valu->readlane"
                    if sW & c["R"] - {("s", "exec")}: need, why = max(need, 2), "valu sgpr->valu"
                    if p.get("sdwa") and vW & c["R"]: need, why = max(need, 1), "sdwa->valu"
                if c["cls"] == "vmem" and sW & c["R"]: need, why = max(need, 5), "valu sgpr->vmem"
                if ("s", "exec") in sW and c["cls"] == "mfma": need, why = max(need, 4), "valu exec->mfma"
            if p["cls"] == "mfma":
                ps = p["passes"]; big = {4: 8, 8: 12}[ps]
                if c["cls"] == "mfma":
                    if p["W"] & c["AB"]: need, why = big, "mfma D->mfma AB"
                    elif p["W"] & c["C"] and p["W"] != c["C"]: need, why = {4: 6, 8: 10}[ps], "mfma D->partial C"
                elif c["cls"] in ("valu", "ds", "vmem"):
                    if p["W"] & (c["R"] | c["W"]): need, why = big, "mfma D->valu/mem"
                    elif c["cls"] == "valu" and p["C"] & c["W"]: need, why = {4: 3, 8: 7}[ps], "mfma C WAR"
            if p["cls"] == "vmem" and p.get("wide_data") and p["wide_data"] & c["W"] and c["cls"] in ("valu", "mfma"): need, why = max(need, 2), "store data WAR"
            if p["cls"] == "salu" and ("s", "m0") in p["W"] and c.get("dma"): need, why = max(need, 1), "m0->dma"
            if need > dist: errs.append(f"{name}: {why} need {need} have {dist}: [{p['line']}] -> [{c['line']}]")
            dist += p.get("nop", 1)
            if dist >= 20: break
    return errs

def sizes(lines):
    uniq = {}
    for l in lines:
        p = l.split(";")[0].strip()
        if p and not p.endswith(":") and not p.startswith("."):
            key = re.sub(r"(s_c?branch\w*)\s+\S+", r"\1 0", p)
            uniq.setdefault(key, None)
    keys = [k for k in uniq if not re.search(r"[A-Za-z_]\w*\s*-\s*[A-Za-z_]\w*|@", k)]
    r = subprocess.run([f"{LLVM}/llvm-mc", "-triple=amdgcn-amd-amdhsa", "-mcpu=gfx950", "-show-encoding"], input="\n".join(keys) + "\n", capture_output=True, text=True)
    enc = [x for x in r.stdout.split("\n") if "encoding:" in x]
    assert len(enc) == len(keys), r.stderr[:2000]
    for k, e in zip(keys, enc): uniq[k] = e.count("0x", e.index("encoding:"))
    out = []
    for l in lines:
        p = l.split(";")[0].strip()
        if p and not p.endswith(":") and not p.startswith("."):
            key = re.sub(r"(s_c?branch\w*)\s+\S+", r"\1 0", p)
            out.append(uniq[key] if uniq[key] else 8)
        else: out.append(0)
    return out
```

```python
from g import *
WS_XB = 0x0
WS_XT = 0x240000
WS_KG = 0x480100
KSTR = 4160
WS_YT = 0x700000
WS_PP = 0x1000000
NKG = 288
NLN = 128
K1_LDS = 71680
CH_LDS = 35840
F_OFF = 33792

def srd(a, s, ptr, nbytes):
    a(f"""s_mov_b32 s{s}, s{ptr}
    s_and_b32 s{s+1}, s{ptr+1}, 0xffff
    s_mov_b32 s{s+2}, {nbytes}
    s_mov_b32 s{s+3}, 0x20000""")

def code_prefetch(a, lab_from, lab_to, vidx, vt, st, tag):
    a(f"s_getpc_b64 s[{st}:{st+1}]\n{tag}_pc:")
    if lab_from is None: lab_from = f"{tag}_pc"
    else:
        a(f""".if ({lab_from}-{tag}_pc) < 0
        .error "code_prefetch: label must be later in the file"
        .endif""") if False else None
        a(f"s_add_u32 s{st}, s{st}, {lab_from}-{tag}_pc\ns_addc_u32 s{st+1}, s{st+1}, 0")
    a(f"""v_lshlrev_b32 v{vt}, 7, v{vidx}
    v_min_u32 v{vt}, {lab_to}-{lab_from}-4, v{vt}
    v_mov_b32 v{vt+1}, s{st+1}
    v_add_co_u32 v{vt}, vcc, s{st}, v{vt}
    s_nop 1
    v_addc_co_u32 v{vt+1}, vcc, 0, v{vt+1}, vcc""")
    a.vmem(f"global_load_dword v{vt+2}, v[{vt}:{vt+1}], off", "pf")

def bf16r(a, v):
    a(f"v_cvt_pk_bf16_f32 v{v}, v{v}, v{v}\nv_and_b32 v{v}, 0xffff0000, v{v}")

def expf(a, d, x, t):
    a(f"""v_mul_f32 v{d}, s40, v{x}
    v_fma_f32 v{t}, v{x}, s40, -v{d}
    v_fma_f32 v{t}, v{x}, s41, v{t}
    v_exp_f32 v{d}, v{d}
    v_mul_f32 v{t}, s42, v{t}
    v_fma_f32 v{d}, v{d}, v{t}, v{d}""")

def gen_k1(a, name, pf_from, pf_to):
    a.kernel_begin(name)
    a(f"""s_cmp_ge_u32 s2, {NKG+NLN}
    s_cbranch_scc1 {name}_end
    s_load_dwordx16 s[4:19], s[0:1], 0
    s_load_dwordx4 s[20:23], s[0:1], 64
    s_load_dwordx2 s[24:25], s[0:1], 96""")
    code_prefetch(a, None, f"{name}_end", 0, 2, 26, name + "_a")
    a(f"""v_and_b32 v1, 63, v0
    v_lshrrev_b32 v5, 6, v0
    s_lshr_b32 s30, s2, 3
    v_readfirstlane_b32 s3, v5
    s_lshl_b32 s30, s30, 8
    v_add_u32 v6, s30, v0
    s_and_b32 s31, s2, 7
    s_waitcnt lgkmcnt(0)""")
    srd(a, 32, 24, 0x10000000)
    srd(a, 44, 20, 5308416)
    srd(a, 48, 22, 5308416)
    def weight_prefetch():
        a(f"""s_movk_i32 s26, 3641
        v_mul_lo_u32 v7, v6, s26
        v_lshrrev_b32 v7, 16, v7
        v_mul_u32_u24 v8, 18, v7
        v_sub_u32 v8, v6, v8
        v_mul_u32_u24 v7, 9216, v7
        v_lshl_add_u32 v7, v8, 6, v7
        s_mul_i32 s27, s31, 1152
        s_mul_i32 s28, s31, 663552
        v_lshlrev_b32 v8, 6, v6""")
        a.vmem("buffer_load_dword v9, v7, s[44:47], s27 offen", "pf")
        a.vmem("buffer_load_dword v10, v8, s[48:51], s28 offen", "pf")
        code_prefetch(a, pf_from, pf_to, 6, 2, 26, name + f"_b{len(a.l)}")
    a(f"""s_cmp_ge_u32 s2, {NKG}
    s_cbranch_scc1 {name}_ln""")
    vm0 = list(a.vm)
    a(f"""s_lshr_b32 s36, s3, 1
    s_and_b32 s37, s3, 1
    s_lshl_b32 s38, s2, 1
    s_add_u32 s38, s38, s36
    s_lshl_b32 s39, s38, 8
    s_lshl_b32 s26, s37, 7
    s_add_u32 s39, s39, s26
    v_lshlrev_b32 v11, 1, v1
    s_lshl_b32 s43, s38, 1
    v_mov_b32 v12, s43""")
    for i, p in enumerate([6, 8, 10, 12]):
        srd(a, 52, p, 147456)
        a.vmem(f"buffer_load_ushort v{16+i}, v11, s[52:55], s39 offen", "par")
    srd(a, 52, 14, 1152); a.vmem("buffer_load_ushort v20, v12, s[52:55], 0 offen", "par")
    srd(a, 56, 16, 1152); a.vmem("buffer_load_ushort v21, v12, s[56:59], 0 offen", "par")
    weight_prefetch()
    a(f"""s_mov_b32 s40, 0x3fb8aa3b
    s_mov_b32 s41, 0x32a5705f
    s_mov_b32 s42, 0x3f317218
    s_mul_i32 s43, s36, {CH_LDS}
    s_lshl_b32 s26, s37, 8
    s_add_u32 s26, s26, s43
    v_lshl_add_u32 v13, v1, 2, s26""")
    a.wait(vm="par")
    for i in range(6): a(f"v_lshlrev_b32 v{16+i}, 16, v{16+i}")
    expf(a, 22, 20, 24); expf(a, 23, 16, 25)
    bf16r(a, 22); bf16r(a, 23)
    a(f"""v_mul_f32 v23, v23, v22
    v_mul_f32 v17, v17, v22
    v_mul_f32 v18, v18, v22
    v_mul_f32 v19, v19, v22
    v_mul_f32 v23, 0xbfb8aa3b, v23
    v_mul_f32 v17, 0.15915494, v17
    v_add_f32 v18, v18, v18
    v_add_f32 v19, v19, v19""")
    def cexp(d, p):
        a(f"""v_mul_f32 v24, {p}, v23
        v_mul_f32 v25, {p}, v17
        v_exp_f32 v24, v24
        v_fract_f32 v25, v25
        v_cos_f32 v{d}, v25
        v_sin_f32 v{d+1}, v25
        s_nop 0
        v_mul_f32 v{d}, v{d}, v24
        v_mul_f32 v{d+1}, v{d+1}, v24""")
    def cmul(d, x, y, t=24):
        a(f"""v_mul_f32 v{t}, v{x+1}, v{y+1}
        v_mul_f32 v{t+1}, v{x+1}, v{y}
        v_fma_f32 v{t+1}, v{x}, v{y+1}, v{t+1}
        v_fma_f32 v{d}, v{x}, v{y}, -v{t}
        v_mov_b32 v{d+1}, v{t+1}""") if d == x or d == y else a(f"""v_mul_f32 v{t}, v{x+1}, v{y+1}
        v_mul_f32 v{t+1}, v{x+1}, v{y}
        v_fma_f32 v{d}, v{x}, v{y}, -v{t}
        v_fma_f32 v{d+1}, v{x}, v{y+1}, v{t+1}""")
    tog = [0]
    def put(row, x, neg):
        r = 26 + tog[0]; tog[0] ^= 1
        a(f"v_cvt_pk_bf16_f32 v{r}, v{x}, {'-' if neg else ''}v{x+1}")
        a.lds(f"ds_write_b32 v13, v{r} offset:{row*528}", "tw")
    E1, E8, E256, E16 = 28, 30, 32, 34
    cexp(E1, "1.0"); cexp(E8, "0x41000000"); cexp(E256, "0x43800000")
    cmul(E16, E8, E8)
    A0, A1, B0, B1 = 36, 38, 40, 42
    a(f"v_mov_b32 v{A0}, 1.0\nv_mov_b32 v{A0+1}, 0")
    put(32, A0, False); put(33, E8, False); put(34, E16, False)
    ce, co = E16, E8
    pe, po = [A0, A1], [B0, B1]
    for b in range(3, 32):
        if b % 2 == 1:
            d = po[(b // 2) % 2]; cmul(d, co, E16); co = d; put(32 + b, d, False)
        else:
            d = pe[(b // 2) % 2]; cmul(d, ce, E16); ce = d; put(32 + b, d, False)
    G = {0: 18}
    put(0, 18, True)
    keep = {2: 44, 4: 46, 6: 48}
    prev = 18
    for j in range(1, 8):
        d = keep.get(j, [A0, A1][j // 2 % 2]); cmul(d, prev, E1); put(j, d, True); prev = d
    rows_m = {1: 8, 2: 12, 3: 14, 4: 16, 5: 17, 6: 18, 7: 19, 8: 20}
    prev = 18
    for m in range(1, 9):
        d = [A0, A1][m % 2]; cmul(d, prev, E256); put(rows_m[m], d, True); prev = d
        if m == 1: cmul(B0, 44, E256); put(9, B0, True)
        if m == 2: cmul(B1, 46, E256); put(10, B1, True)
        if m == 3: cmul(B0, 48, E256); put(11, B0, True)
        if m == 4: cmul(B0, B1, E256); put(13, B0, True)
        if m == 5: cmul(B1, B0, E256); put(15, B1, True)
    a(f"""v_and_b32 v14, 15, v1
    v_lshrrev_b32 v15, 4, v1
    v_mul_u32_u24 v24, 528, v14
    v_lshl_add_u32 v24, v15, 4, v24
    v_add_u32 v24, s43, v24
    s_mul_i32 s26, s37, {16*528}
    s_add_u32 s26, s26, {32*528}
    v_add_u32 v25, s26, v24""")
    a.waitall(vm=False); a("s_barrier")
    def rd(ks):
        r = 36 + (ks % 2) * 12
        a.lds(f"ds_read_b128 v[{r}:{r+3}], v24 offset:{ks*64}", ("f", ks))
        a.lds(f"ds_read_b128 v[{r+4}:{r+7}], v24 offset:{16*528+ks*64}", ("f", ks))
        a.lds(f"ds_read_b128 v[{r+8}:{r+11}], v25 offset:{ks*64}", ("f", ks))
    rd(0)
    for ks in range(8):
        if ks < 7: rd(ks + 1)
        a.wait(lg=("f", ks))
        r = 36 + (ks % 2) * 12
        a(f"v_mfma_f32_16x16x32_bf16 v[28:31], v[{r}:{r+3}], v[{r+8}:{r+11}], {'v[28:31]' if ks else 0}")
        a(f"v_mfma_f32_16x16x32_bf16 v[32:35], v[{r+4}:{r+7}], v[{r+8}:{r+11}], {'v[32:35]' if ks else 0}")
    a(f"""s_lshl_b32 s26, s37, 4
    v_add_u32 v14, s26, v14
    s_add_u32 s43, s43, {F_OFF}
    v_lshlrev_b32 v36, 4, v14
    v_lshl_add_u32 v36, v15, 3, v36
    v_lshlrev_b32 v37, 3, v14
    v_add_u32 v37, 512, v37
    v_lshlrev_b32 v38, 2, v14
    v_add_u32 v38, 768, v38
    v_cmp_eq_u32 vcc, 2, v15
    v_lshlrev_b32 v39, 1, v14
    v_add_u32 v39, 1024, v39
    v_cndmask_b32 v36, v36, v37, vcc
    v_cmp_eq_u32 vcc, 3, v15
    v_mov_b32 v40, 4
    v_mov_b32 v41, 0x80
    v_cndmask_b32 v36, v36, v38, vcc
    v_cndmask_b32 v40, v40, v41, vcc
    v_add_u32 v36, s43, v36
    v_add_u32 v40, v40, v36
    v_cmp_eq_u32 vcc, 0, v15
    v_mov_b32 v41, 1408
    v_lshl_add_u32 v42, v14, 6, v1
    v_cndmask_b32 v39, v41, v39, vcc
    v_cmp_eq_u32 vcc, 16, v42
    v_mov_b32 v41, 1280
    v_mov_b32 v43, 0
    v_cndmask_b32 v39, v39, v41, vcc
    v_cmp_eq_u32 vcc, 0, v42
    v_add_u32 v39, s43, v39
    s_nop 0
    v_cndmask_b32 v43, v43, v21, vcc
    v_add_f32 v28, v28, v43
    v_cvt_pk_bf16_f32 v28, v28, v29
    v_cvt_pk_bf16_f32 v29, v30, v31
    v_cvt_pk_bf16_f32 v32, v32, v33
    v_cvt_pk_bf16_f32 v33, v34, v35""")
    a.lds("ds_write_b32 v36, v28", "fw"); a.lds("ds_write_b32 v40, v29", "fw")
    a.lds("ds_write_b16 v39, v32", "fw"); a.lds("ds_write_b16_d16_hi v39, v32 offset:64", "fw")
    a.lds("ds_write_b16 v39, v33 offset:128", "fw"); a.lds("ds_write_b16_d16_hi v39, v33 offset:192", "fw")
    a(f"""s_mul_i32 s26, s38, {KSTR}
    s_add_u32 s26, s26, {WS_KG}
    s_lshl_b32 s27, s37, 10
    s_add_u32 s27, s27, s26
    v_lshlrev_b32 v44, 4, v1
    s_lshl_b32 s28, s37, 6
    v_add_u32 v45, s28, v1
    v_lshrrev_b32 v46, 1, v45
    v_lshl_add_u32 v46, v46, 2, s43
    v_and_b32 v45, 1, v45
    s_mov_b32 s52, 0x01000100
    s_mov_b32 s53, 0x03020100
    s_mov_b32 s54, 0x03020302
    s_mov_b32 s55, 0x05040504
    v_cmp_eq_u32 vcc, 1, v45
    v_mov_b32 v47, s52
    v_mov_b32 v48, s53
    v_mov_b32 v49, s54
    v_mov_b32 v50, s55
    v_cndmask_b32 v47, v47, v49, vcc
    v_cndmask_b32 v48, v48, v50, vcc
    v_cndmask_b32 v49, v49, v50, vcc""")
    a.waitall(vm=False); a("s_barrier")
    a.lds("ds_read2_b32 v[28:29], v46 offset0:0 offset1:1".replace("offset0:0 offset1:1", "offset0:0 offset1:1").replace("v46", "v46"), "d")
    a.l[-1] = "ds_read2_b32 v[28:29], v51 offset0:0 offset1:1"
    a.l.insert(len(a.l) - 1, "v_add_u32 v51, 1024, v46")
    a(f"""s_cmp_eq_u32 s37, 0
    s_cbranch_scc0 {name}_segc""")
    lg0 = list(a.lg)
    a(f"""v_lshlrev_b32 v36, 4, v1
    v_lshlrev_b32 v37, 3, v1
    v_add_u32 v37, 256, v37
    v_cmp_gt_u32 vcc, 32, v1
    v_mov_b32 v52, 0
    v_mov_b32 v53, 0
    v_cndmask_b32 v36, v37, v36, vcc
    v_add_u32 v36, s43, v36""")
    a.lds("ds_read_b64 v[32:33], v36", "ab"); a.lds("ds_read_b64 v[34:35], v36 offset:8", "ab")
    a(f"""v_mov_b32 v54, 0
    v_mov_b32 v55, 0
    s_mov_b64 exec, 15""")
    a.vmem("buffer_store_dwordx4 v[52:55], v44, s[32:35], s26 offen", "st")
    a("s_mov_b64 exec, -1")
    a.wait(lg="ab")
    a(f"""v_perm_b32 v36, v32, v32, s52
    v_alignbit_b32 v37, v33, v32, 16
    v_perm_b32 v38, v33, v33, s52
    v_alignbit_b32 v39, v34, v33, 16
    v_cndmask_b32 v36, v36, v32, vcc
    v_cndmask_b32 v37, v37, v33, vcc
    v_cndmask_b32 v38, v38, v34, vcc
    v_cndmask_b32 v39, v39, v35, vcc
    s_branch {name}_segd
    {name}_segc:""")
    a.lg = list(lg0)
    a(f"v_lshl_add_u32 v36, v1, 2, s43\nv_add_u32 v36, 768, v36")
    a.lds("ds_read2_b32 v[32:33], v36 offset0:0 offset1:1", "c")
    a.wait(lg="c")
    a(f"""v_perm_b32 v36, v32, v32, s52
    v_mov_b32 v37, v32
    v_perm_b32 v38, v32, v32, s54
    v_perm_b32 v39, v33, v33, s52
    {name}_segd:""")
    a.vmem("buffer_store_dwordx4 v[36:39], v44, s[32:35], s27 offen offset:64", "st")
    a(f"""v_perm_b32 v40, v29, v28, v47
    v_perm_b32 v42, v29, v28, v48
    v_perm_b32 v43, v29, v28, v49
    v_mov_b32 v41, v40""")
    a.vmem("buffer_store_dwordx4 v[40:43], v44, s[32:35], s27 offen offset:2112", "st")
    a("s_endpgm")
    a(f"{name}_ln:")
    a.vm = list(vm0); a.lg = []
    srd(a, 52, 4, 2359296)
    a(f"""s_sub_u32 s36, s2, {NKG}
    s_and_b32 s37, s36, 7
    s_lshr_b32 s36, s36, 3
    s_lshl_b32 s37, s37, 4
    s_add_u32 s36, s36, s37
    s_lshl_b32 s37, s36, 4
    s_lshl_b32 s38, s3, 2
    s_add_u32 s38, s38, s37
    s_mul_i32 s38, s38, 1152
    v_lshrrev_b32 v11, 4, v1
    v_and_b32 v12, 15, v1
    v_mul_u32_u24 v13, 1152, v11
    v_lshl_add_u32 v13, v12, 3, v13""")
    X = 14
    for q in range(9):
        a.vmem(f"buffer_load_dwordx2 v[{X+2*q}:{X+2*q+1}], v13, s[52:55], s38 offen offset:{q*128}", ("x", q))
    weight_prefetch()
    F = 32
    a(f"""v_lshrrev_b32 v68, 3, v12
    v_lshlrev_b32 v68, 10, v68
    v_and_b32 v69, 3, v12
    v_lshl_add_u32 v68, v69, 8, v68
    v_bfe_u32 v69, v12, 2, 1
    v_lshl_add_u32 v68, v69, 3, v68
    s_lshl_b32 s26, s3, 2
    v_add_u32 v69, s26, v11
    v_lshl_add_u32 v68, v69, 4, v68
    v_mov_b32 v70, 0
    v_mov_b32 v71, 0""")
    for q in range(9):
        a.wait(vm=("x", q))
        for h in range(2):
            r = X + 2*q + h; f = F + 4*q + 2*h
            a(f"v_lshlrev_b32 v{f}, 16, v{r}\nv_and_b32 v{f+1}, 0xffff0000, v{r}\nv_add_f32 v70, v70, v{f}\nv_add_f32 v71, v71, v{f+1}")
    def allred(v):
        for s in (8, 4, 2, 1):
            a(f"s_nop 1\nv_add_f32_dpp v{v}, v{v}, v{v} row_ror:{s} row_mask:0xf bank_mask:0xf")
    a("v_add_f32 v70, v70, v71"); allred(70)
    a("v_mul_f32 v70, 0x3ae38e39, v70\nv_mov_b32 v72, 0\nv_mov_b32 v73, 0")
    for i in range(0, 36, 2):
        a(f"v_sub_f32 v74, v{F+i}, v70\nv_sub_f32 v75, v{F+i+1}, v70\nv_fmac_f32 v72, v74, v74\nv_fmac_f32 v73, v75, v75")
    a("v_add_f32 v72, v72, v73"); allred(72)
    a("v_mul_f32 v72, 0x3ae38e39, v72")
    bf16r(a, 70); bf16r(a, 72)
    a("v_add_f32 v72, 0x3727c5ac, v72"); bf16r(a, 72)
    a("v_sqrt_f32 v72, v72\ns_nop 0"); bf16r(a, 72)
    a("v_rcp_f32 v72, v72")
    for q in range(9):
        for h in range(2):
            r = X + 2*q + h; f = F + 4*q + 2*h
            a(f"""v_sub_f32 v{f}, v{f}, v70
            v_sub_f32 v{f+1}, v{f+1}, v70
            v_cvt_pk_bf16_f32 v{r}, v{f}, v{f+1}
            v_lshlrev_b32 v{f}, 16, v{r}
            v_and_b32 v{f+1}, 0xffff0000, v{r}
            v_mul_f32 v{f}, v{f}, v72
            v_mul_f32 v{f+1}, v{f+1}, v72
            v_cvt_pk_bf16_f32 v{r}, v{f}, v{f+1}""")
        a.lds(f"ds_write_b64 v68, v[{X+2*q}:{X+2*q+1}] offset:{q*2048}", "xw")
    a(f"""s_lshl_b32 s26, s3, 10
    v_lshl_add_u32 v14, v1, 4, s26
    v_and_b32 v15, 3, v1
    v_lshlrev_b32 v15, 8, v15
    v_bfe_u32 v16, v1, 2, 2
    v_lshl_add_u32 v15, v16, 4, v15
    v_bfe_u32 v16, v1, 4, 1
    v_lshl_add_u32 v15, v16, 7, v15
    v_lshrrev_b32 v17, 5, v1
    v_lshl_add_u32 v15, v17, 3, v15
    v_add_u32 v15, s26, v15
    v_lshl_add_u32 v17, v17, 4, v12
    v_lshlrev_b32 v17, 12, v17
    v_lshl_add_u32 v17, v16, 4, v17
    v_lshlrev_b32 v18, 4, v1
    s_lshr_b32 s38, s36, 2
    s_mul_i32 s38, s38, 73728
    s_and_b32 s39, s36, 3
    s_lshl_b32 s39, s39, 10
    s_add_u32 s38, s38, s39
    s_lshl_b32 s39, s3, 12
    s_add_u32 s38, s38, s39
    s_lshl_b32 s39, s37, 1
    s_lshl_b32 s40, s3, 17
    s_add_u32 s39, s39, s40
    s_add_u32 s39, s39, {WS_XT}""")
    a.waitall(vm=False); a("s_barrier")
    for it in range(5):
        if it == 4: a(f"s_cmp_ge_u32 s3, 2\ns_cbranch_scc1 {name}_end")
        r = 20 + it * 8
        a.lds(f"ds_read_b128 v[{r}:{r+3}], v14 offset:{it*4096}", ("o", it))
        a.lds(f"ds_read_b64_tr_b16 v[{r+4}:{r+5}], v15 offset:{it*4096}", ("o", it))
        a.lds(f"ds_read_b64_tr_b16 v[{r+6}:{r+7}], v15 offset:{it*4096+64}", ("o", it))
        if it in (3, 4):
            for k in (range(4) if it == 3 else [4]):
                r = 20 + k * 8
                a.wait(lg=("o", k))
                a.vmem(f"buffer_store_dwordx4 v[{r}:{r+3}], v18, s[32:35], s38 offen", "st")
                a.vmem(f"buffer_store_dwordx4 v[{r+4}:{r+7}], v17, s[32:35], s39 offen", "st")
                a(f"s_add_u32 s38, s38, {4*4096}\ns_add_u32 s39, s39, {4*32*4096}")
    a(f"{name}_end:\ns_endpgm")
    a.kernel_desc(name, 76)

if __name__ == "__main__":
    assert all((i * 3641) >> 16 == i // 18 for i in range(13400))
    a = Prog()
    gen_k1(a, "k1_kernel", "after_a", "after_b")
    a("after_a:\n.fill 64, 4, 0xbf800000\nafter_b:")
    for e in check_hazards(a.l, "k1"): print(e)
    open("k1.s", "w").write(a.text(f"; @launch kernel=k1_kernel grid=({NKG+NLN},1,1) block=(256,1,1) lds={K1_LDS}"))
    print("size", sum(sizes(a.l)))
```

```python
from g import *
from k1 import srd, code_prefetch, WS_XB, WS_XT, WS_KG, KSTR, WS_YT, WS_PP
RING = 90112
K2_LDS = 163840
PF = 2; LA = 15
ACC, EE, AR, TMP, PK = 8, 24, 40, 56, 72
V_DA0, V_DA1, V_DB0, V_DB1, V_TR0, V_TR1, V_B0, V_B1, V_HW, V_ST, V_LIN, V_KD, V_KT0, V_KT1, V_UB, V_YS = 80, 81, 82, 83, 84, 85, 86, 87, 88, 89, 90, 91, 92, 93, 94, 95
S_W1K, S_OFF, S_COL, S_CS, S_CE, S_IT, S_STO, S_STS, S_STE, S_NL2E = 18, 19, 20, 21, 22, 23, 24, 25, 26, 50
S_ROWA, S_ROWB = 32, 41
S_KOFF, S_UOFF, S_CLDS, S_YOFF = 52, 53, 54, 55
CW = 22016
NCONV = 144

def Bf(k, mt):
    i = (k * 4 + mt) * 4
    return f"a[{i}:{i+3}]" if k < 16 else f"v[{224+i-256}:{224+i-256+3}]"

def merge_bodies(b1, b2):
    assert len(b1) == len(b2), (len(b1), len(b2))
    out = []
    for x, y in zip(b1, b2):
        if x == y: out.append(x); continue
        assert x.startswith("s_waitcnt") and y.startswith("s_waitcnt"), (x, y)
        c = {}
        for s in (x, y):
            for k, v in re.findall(r"(\w+)\((\d+)\)", s): c[k] = min(c.get(k, 99), int(v))
        out.append("s_waitcnt " + " ".join(f"{k}({v})" for k, v in c.items()))
    return out

def silu_ops(st):
    ops = []
    for mt in range(4):
        for h in range(2):
            x0 = EE + mt*4 + 2*h; x1 = x0 + 1
            t0 = TMP + ((mt*2 + h) % 4) * 2; t1 = t0 + 1
            p = PK + (mt % 2) * 2 + h
            for o, c in [(f"v_mul_f32 v{t0}, s{S_NL2E}, v{x0}", 1), (f"v_mul_f32 v{t1}, s{S_NL2E}, v{x1}", 1),
                         (f"v_exp_f32 v{t0}, v{t0}", 2), (f"v_exp_f32 v{t1}, v{t1}", 2),
                         (f"v_add_f32 v{t0}, 1.0, v{t0}", 1), (f"v_add_f32 v{t1}, 1.0, v{t1}", 1),
                         (f"v_rcp_f32 v{t0}, v{t0}", 2), (f"v_rcp_f32 v{t1}, v{t1}", 2),
                         (f"v_mul_f32 v{t0}, v{x0}, v{t0}", 1), (f"v_mul_f32 v{t1}, v{x1}, v{t1}", 1),
                         (f"v_cvt_pk_bf16_f32 v{p}, v{t0}, v{t1}", 1)]:
                ops.append((o, c, "v", None))
        p = PK + (mt % 2) * 2
        ops.append((f"ds_write_b64 v{V_HW}, v[{p}:{p+1}] offset:{mt*1024}", 1, "ds", ("hw", st)))
    ops.append((f"v_add_u32 v{V_HW}, 0x2000, v{V_HW}", 1, "v", None))
    return ops

def store_ops(st):
    ops = []
    for pr in range(2):
        p = PK + pr * 4
        for j in range(2):
            mt = pr*2 + j
            ops.append((f"v_cvt_pk_bf16_f32 v{p+2*j}, v{EE+mt*4}, v{EE+mt*4+1}", 1, "v", None))
            ops.append((f"v_cvt_pk_bf16_f32 v{p+2*j+1}, v{EE+mt*4+2}, v{EE+mt*4+3}", 1, "v", None))
        ops.append(("s_nop 1", 0, "s", None))
        ops.append((f"v_permlane16_swap_b32 v{p}, v{p+2}", 1, "v", None))
        ops.append((f"v_permlane16_swap_b32 v{p+1}, v{p+3}", 1, "v", None))
        ops.append((f"buffer_store_dwordx4 v[{p}:{p+3}], v{V_ST}, s[12:15], s{S_STO} offen offset:{pr*1024}", 0, "vm", ("st", st)))
    ops += [(f"s_add_u32 s{S_STO}, s{S_STO}, 0x2000", 0, "s", None), (f"s_cmp_eq_u32 s{S_STO}, s{S_STE}", 0, "s", None),
            (f"s_cselect_b32 s{S_STO}, s{S_STS}, s{S_STO}", 0, "s", None)]
    return ops

def emit_op(a, op):
    t, c, kind, tag = op
    if kind == "ds": a.lds(t, tag)
    elif kind == "vm": a.vmem(t, tag)
    else: a(t)

def tr_reads(a, u):
    off = (u % 18) * 4096; base = V_TR0
    if off >= 9*4096: off -= 9*4096; base = V_TR1
    r = AR + (u % 3) * 4
    return [(f"ds_read_b64_tr_b16 v[{r}:{r+1}], v{base} offset:{off}", 1, "ds", ("A", u)),
            (f"ds_read_b64_tr_b16 v[{r+2}:{r+3}], v{base} offset:{off+2048}", 1, "ds", ("A", u))]
def b_reads(a, u):
    k = u % 18; off = k * 4096; base = V_B0
    if k >= 9: off -= 9*4096; base = V_B1
    return [(f"ds_read_b128 {Bf(k, mt)}, v{base} offset:{off + mt*1024}", 1, "ds", ("A", u)) for mt in range(4)]
def w_dma(u):
    st, k = divmod(u, 18)
    A = st < 9
    pre = []
    if k == 0 and u >= 18 and st != 9:
        pre += [f"s_add_u32 s{S_COL}, s{S_COL}, 128", f"s_cmp_eq_u32 s{S_COL}, s{S_CE}", f"s_cselect_b32 s{S_COL}, s{S_CS}, s{S_COL}"]
    if u == 9*18:
        pre += [f"s_mov_b32 s{S_COL}, s27", f"s_mov_b32 s{S_CS}, 0", f"s_movk_i32 s{S_CE}, 1152"]
    if k % 2 == 0: pre.append(f"s_add_u32 s{S_OFF}, s{(S_ROWA if A else S_ROWB) + k//2}, s{S_COL}")
    v = (V_DA0 if A else V_DB0) + (k & 1)
    return pre, f"s_add_u32 m0, s{S_W1K}, {RING + k*4096}", (f"buffer_load_dwordx4 v{v}, s[{4 if A else 8}:{7 if A else 11}], s{S_OFF} offen lds", 0, "vm", ("W", u))
def conv_dma(i):
    if i < 4:
        return [f"s_add_u32 s{S_OFF}, s{S_UOFF}, {i*1024}"], f"s_add_u32 m0, s{S_CLDS}, {17408 + 512 + i*1024}", (f"buffer_load_dwordx4 v{V_LIN}, s[12:15], s{S_OFF} offen lds", 0, "vm", "cv")
    i -= 4
    return [f"s_add_u32 s{S_OFF}, s{S_KOFF}, {i*256}"], f"s_add_u32 m0, s{S_CLDS}, {i*1024}", (f"buffer_load_dwordx4 v{V_KD}, s[12:15], s{S_OFF} offen lds", 0, "vm", "cv")

def stage(a, st, epi, breads, extra_dma=None, last=16):
    q = list(epi)
    total_cost = sum(o[1] for o in q)
    first = 1
    spent = 0
    NU = 18 * 18
    xd = list(extra_dma or [])
    for k in range(18):
        u = st * 18 + k
        gaps = [[], [], [], []]
        S = lambda t: (t, 0, "s", None)
        u2 = u + PF
        if u2 < NU and u2 % 3 == 0: gaps[0].append(S("s_barrier"))
        vec = [[], [], [], []]
        if u2 < NU:
            rd = tr_reads(a, u2)
            bst = u2 // 18
            if breads(u2): rd = rd + b_reads(a, u2)
            if len(rd) == 2: vec[0] += rd
            else:
                vec[0] += rd[0:2]; vec[1] += rd[2:4]; vec[2] += rd[4:6]
        ud = u + LA
        dm = None
        if ud < NU: dm = w_dma(ud)
        elif xd: dm = xd.pop(0)
        if dm:
            pre, m0, op = dm
            tgt = gaps[0] if not gaps[0] else gaps[1]
            for x in pre: tgt.append(S(x))
            gaps[1].append(S(m0)); gaps[2].append(op)
        dm2 = None
        if ud >= NU and xd and k % 2 == 0: dm2 = xd.pop(0)
        if first <= k <= last and q:
            target = total_cost * (k - first + 1) / (last - first + 1)
            for gi in (1, 2, 3):
                room = 2 - sum(o[1] for o in vec[gi])
                while q and spent < target + 1e-9 and (q[0][1] <= room or (gi == 3 and spent + q[0][1] <= target + 1)):
                    if q[0][2] == "ds" and vec[gi] and vec[gi][-1][2] != "ds": break
                    o = q.pop(0); vec[gi].append(o); room -= o[1]; spent += o[1]
        if k == last:
            while q: vec[3].append(q.pop(0))
        for mt in range(4):
            d = f"v[{ACC+mt*4}:{ACC+mt*4+3}]"
            dst = f"v[{EE+mt*4}:{EE+mt*4+3}]" if k == 17 else d
            r = AR + (u % 3) * 4
            a(f"v_mfma_f32_16x16x32_bf16 {dst}, v[{r}:{r+3}], {Bf(k, mt)}, {d if k else 0}")
            if mt == 3:
                if dm2:
                    pre, m0, op = dm2
                    for x in pre + [m0, "s_nop 0"]: a(x)
                    emit_op(a, op)
                un = u + 1
                if un < NU:
                    vm = None; lg = [("A", un)]
                    if un + PF < NU and (un + PF) % 3 == 0:
                        vm = [("W", un + PF + j) for j in range(3)] + [("X", un + PF + j) for j in range(3)]
                        lgx = [("hw", s) for s in range(18)]
                    else: lgx = []
                    w = a.wait_str(vm=vm, lg=lg + lgx)
                    a(w if w else "s_nop 0")
            for o in gaps[mt]: emit_op(a, o)
            for o in vec[mt]: emit_op(a, o)
    assert not q and not xd, (q, xd)

def gen_k2(a, name, pf_to):
    a.kernel_begin(name)
    a(f"""s_cmp_ge_u32 s2, 256
    s_cbranch_scc1 {name}_end
    s_load_dwordx4 s[28:31], s[0:1], 64
    s_load_dwordx2 s[56:57], s[0:1], 96""")
    code_prefetch(a, None, pf_to, 0, 2, 58, name + "_a")
    a(f"""v_and_b32 v1, 63, v0
    v_lshrrev_b32 v5, 6, v0
    s_lshr_b32 s16, s2, 3
    v_readfirstlane_b32 s3, v5
    s_and_b32 s17, s2, 7
    ; rotations: crotA = T % 9 (s60), q = T / 9 (s61)
    s_mul_i32 s61, s16, 29
    s_lshr_b32 s61, s61, 8
    s_mul_i32 s60, s61, 9
    s_sub_u32 s60, s16, s60
    s_lshl_b32 s61, s61, 1
    s_lshl_b32 s{S_W1K}, s3, 10
    v_lshrrev_b32 v6, 3, v1
    v_and_b32 v7, 7, v1
    v_and_b32 v9, 6, v6
    v_xor_b32 v7, v7, v9
    v_lshlrev_b32 v7, 4, v7
    s_lshl_b32 s62, s3, 3
    v_add_u32 v6, s62, v6
    v_mul_u32_u24 v{V_DA0}, 9216, v6
    v_mul_u32_u24 v{V_DB0}, 1152, v6
    v_add_u32 v{V_DA0}, v{V_DA0}, v7
    v_add_u32 v{V_DB0}, v{V_DB0}, v7
    v_add_u32 v{V_DA1}, {32*9216}, v{V_DA0}
    v_add_u32 v{V_DB1}, {32*1152}, v{V_DB0}
    v_lshlrev_b32 v{V_LIN}, 4, v1
    s_mul_i32 s{S_CS}, s17, 1152
    s_add_u32 s{S_CE}, s{S_CS}, 1152
    s_lshl_b32 s62, s60, 7
    s_add_u32 s{S_COL}, s{S_CS}, s62
    s_mul_i32 s63, s16, 73728
    s_add_u32 s63, s63, s{S_W1K}
    s_mov_b32 s64, s61""")
    a("s_waitcnt lgkmcnt(0)")
    srd(a, 4, 28, 5308416); srd(a, 8, 30, 5308416); srd(a, 12, 56, 0x10000000)
    for j in range(9):
        a(f"""s_mul_i32 s{S_ROWA+j}, s64, {64*9216}
        s_lshl_b32 s{65+j}, s64, 13
        s_add_u32 s{65+j}, s{65+j}, s63
        s_add_u32 s64, s64, 1
        s_cmp_eq_u32 s64, 9
        s_cselect_b32 s64, 0, s64""")
    def x_dma(k):
        a(f"s_add_u32 m0, s{S_W1K}, {k*4096}")
        if k & 1: a(f"s_add_u32 s{65+k//2}, s{65+k//2}, 0x1000")
        else: a("s_nop 0")
        a.vmem(f"buffer_load_dwordx4 v{V_LIN}, s[12:15], s{65+k//2} offen lds", ("X", k))
    for s in range(6):
        for k in range(3*s, 3*s+3): x_dma(k)
        for k in range(3*s, min(3*s+3, LA)):
            pre, m0, op = w_dma(k)
            a(m0)
            for x in pre: a(x)
            if not pre: a("s_nop 0")
            emit_op(a, op)
    a(f"""s_mul_i32 s63, s17, {576*1152}
    s_mov_b32 s64, s60""")
    for j in range(9):
        a(f"""s_mul_i32 s{S_ROWB+j}, s64, {64*1152}
        s_add_u32 s{S_ROWB+j}, s{S_ROWB+j}, s63
        s_add_u32 s64, s64, 1
        s_cmp_eq_u32 s64, 9
        s_cselect_b32 s64, 0, s64""")
    a(f"""s_lshl_b32 s27, s61, 7
    s_lshl_b32 s62, s17, 5
    s_add_u32 s62, s62, s16
    s_mul_i32 s62, s62, 73728
    s_lshl_b32 s63, s3, 11
    s_add_u32 s62, s62, s63
    s_add_u32 s{S_STS}, s62, {WS_PP}
    s_add_u32 s{S_STE}, s{S_STS}, 73728
    s_lshl_b32 s63, s61, 13
    s_add_u32 s{S_STO}, s{S_STS}, s63
    v_mov_b32 v{V_ST}, v{V_LIN}
    s_mov_b32 s{S_NL2E}, 0xbfb8aa3b
    v_lshrrev_b32 v6, 2, v1
    v_bfe_u32 v7, v1, 3, 2
    v_xor_b32 v7, s3, v7
    v_lshlrev_b32 v7, 5, v7
    v_and_b32 v9, 3, v1
    v_lshl_add_u32 v7, v9, 3, v7
    v_lshl_add_u32 v7, v6, 7, v7
    v_add_u32 v{V_TR0}, {RING}, v7
    v_add_u32 v{V_TR1}, {RING + 9*4096}, v7
    v_mov_b32 v{V_B0}, v{V_LIN}
    v_add_u32 v{V_B1}, {9*4096}, v{V_LIN}
    s_lshr_b32 s62, s3, 1
    s_lshl_b32 s62, s62, 12
    s_and_b32 s63, s3, 1
    s_lshl_b32 s63, s63, 3
    s_add_u32 s62, s62, s63
    v_add_u32 v{V_HW}, s62, v{V_LIN}
    s_lshl_b32 s62, s2, 2
    s_add_u32 s62, s62, s3
    s_min_u32 s62, s62, 575
    s_mul_i32 s{S_KOFF}, s62, {KSTR}
    s_add_u32 s{S_KOFF}, s{S_KOFF}, {WS_KG - 8}
    s_lshl_b32 s63, s62, 12
    s_add_u32 s{S_UOFF}, s63, {WS_XT}
    s_add_u32 s{S_YOFF}, s63, {WS_YT}
    s_mul_i32 s{S_CLDS}, s3, {CW}
    v_lshrrev_b32 v6, 4, v1
    v_bfe_u32 v7, v1, 2, 2
    v_lshlrev_b32 v10, 6, v6
    v_lshl_add_u32 v10, v9, 4, v10
    v_lshlrev_b32 v11, 1, v7
    v_sub_u32 v10, v10, v11
    v_add_u32 v{V_KD}, 8, v10
    v_lshlrev_b32 v10, 2, v9
    v_lshlrev_b32 v11, 3, v6
    v_sub_u32 v10, v10, v11
    v_add_u32 v11, 44, v10
    v_add_u32 v10, 48, v10
    v_lshlrev_b32 v12, 6, v7
    v_add_u32 v12, s{S_CLDS}, v12
    v_lshrrev_b32 v13, 5, v10
    v_and_b32 v10, 31, v10
    v_lshl_add_u32 v10, v10, 1, v12
    v_lshl_add_u32 v{V_KT0}, v13, 8, v10
    v_lshrrev_b32 v13, 5, v11
    v_and_b32 v11, 31, v11
    v_lshl_add_u32 v11, v11, 1, v12
    v_lshl_add_u32 v{V_KT1}, v13, 8, v11
    v_and_b32 v10, 15, v1
    v_lshlrev_b32 v11, 5, v10
    v_lshl_add_u32 v11, v6, 4, v11
    v_add_u32 v11, s{S_CLDS}, v11
    v_add_u32 v{V_UB}, {17408 + 512 - 480}, v11
    v_lshlrev_b32 v11, 5, v10
    v_lshl_add_u32 v{V_YS}, v6, 3, v11""")
    a.wait(vm=[("W", j) for j in range(3)] + [("X", j) for j in range(3)])
    a("s_barrier")
    for u in range(PF):
        for o in tr_reads(a, u) + b_reads(a, u): emit_op(a, o)
    a.wait(lg=("A", 0))
    brA = lambda u: u < 18
    brB = lambda u: 9*18 <= u < 10*18
    stage(a, 0, [], brA)
    def loop(st0, n, epi, br, lab):
        mark = len(a.l)
        bodies = []
        for i in range(n):
            stage(a, st0 + i, epi(st0 + i - 1), br)
            bodies.append(a.l[mark:]); del a.l[mark:]
        body = bodies[0]
        for b in bodies[1:]: body = merge_bodies(body, b)
        a(f"s_mov_b32 s{S_IT}, {n}\n.p2align 3\n{lab}:")
        a.l += body
        a(f"s_sub_u32 s{S_IT}, s{S_IT}, 1\ns_cmp_lg_u32 s{S_IT}, 0\ns_cbranch_scc1 {lab}")
    loop(1, 7, silu_ops, brA, name + "_la")
    stage(a, 8, silu_ops(7), brB)
    stage(a, 9, silu_ops(8), brB, last=11)
    loop(10, 7, store_ops, brB, name + "_lb")
    stage(a, 17, store_ops(16), brB, extra_dma=[conv_dma(i) for i in range(21)])
    a("s_nop 4")
    for o in store_ops(17)[:-3]: emit_op(a, o)
    a(f"s_cmp_ge_u32 s2, {NCONV}\ns_cbranch_scc1 {name}_end")
    CA, CR = 96, 128
    a(f"""v_mov_b32 v40, 0
    v_mov_b32 v41, 0
    v_mov_b32 v42, 0
    v_mov_b32 v43, 0
    v_add_u32 v44, s{S_CLDS}, v{V_LIN}
    s_bfm_b64 exec, 32, 0""")
    a.lds(f"ds_write_b128 v44, v[40:43] offset:17408", "z")
    a("s_mov_b64 exec, -1")
    a.wait(vm="cv")
    PFC = 6
    def kt(kk):
        r = CR + (kk % 8) * 4
        return [(f"ds_read_b64_tr_b16 v[{r}:{r+1}], v{V_KT0} offset:{kk*256}", 1, "ds", ("K", kk)),
                (f"ds_read_b64_tr_b16 v[{r+2}:{r+3}], v{V_KT1} offset:{kk*256}", 1, "ds", ("K", kk))]
    def ub(kk):
        return [(f"ds_read_b128 a[{4*i}:{4*i+3}], v{V_UB} offset:{i*64}", 1, "ds", ("U", kk)) for i in range(7 - kk, 64, 8)]
    for o in kt(0) + ub(0): emit_op(a, o)
    pend = []
    for kk in range(64):
        nxt = []
        if kk == 0: nxt = kt(1) + ub(1)
        elif kk < 7: nxt = kt(kk + 1) + ub(kk + 1)
        elif kk == 7: nxt = sum([kt(j) for j in range(8, 8 + PFC)], [])
        elif kk + PFC < 64 + 0 and kk >= 8: nxt = kt(kk + PFC) if kk + PFC < 64 else []
        a.wait(lg=[("K", kk), ("U", kk)])
        tiles = list(range(kk // 8, 8))
        nxt = nxt + pend; pend = []
        per = -(-len(nxt) // len(tiles))
        r = CR + (kk % 8) * 4
        for j, I in enumerate(tiles):
            i = 8*I - kk + 7
            c = f"v[{CA+4*I}:{CA+4*I+3}]"
            a(f"v_mfma_f32_16x16x32_bf16 {c}, v[{r}:{r+3}], a[{4*i}:{4*i+3}], {c if kk else 0}")
            for o in nxt[j*per:(j+1)*per]: emit_op(a, o)
        if kk % 8 == 1 and kk > 8 or kk == 63:
            Is = [kk // 8 - 1] + ([7] if kk == 63 else []) if kk != 63 else [7]
            for I in Is:
                if kk == 63: a("s_nop 7")
                p = PK + (I % 2) * 2
                pend += [(f"v_cvt_pk_bf16_f32 v{p}, v{CA+4*I}, v{CA+4*I+1}", 1, "v", None), (f"v_cvt_pk_bf16_f32 v{p+1}, v{CA+4*I+2}, v{CA+4*I+3}", 1, "v", None),
                         (f"buffer_store_dwordx2 v[{p}:{p+1}], v{V_YS}, s[12:15], s{S_YOFF} offen offset:{I*512}", 0, "vm", "y")]
    for o in pend: emit_op(a, o)
    a(f"{name}_end:\ns_endpgm")
    a.kernel_desc(name, 512, accum=256)
```

```python
from g import *
from k1 import srd, code_prefetch, WS_YT, WS_PP
K3_LDS = 9 * 1024
def gen_k3(a, name):
    a.kernel_begin(name)
    a(f"""s_cmp_ge_u32 s2, 256
    s_cbranch_scc1 {name}_end
    s_load_dwordx2 s[4:5], s[0:1], 0
    s_load_dwordx2 s[6:7], s[0:1], 80
    s_load_dwordx2 s[8:9], s[0:1], 96
    v_and_b32 v1, 63, v0
    v_lshrrev_b32 v5, 6, v0
    s_and_b32 s10, s2, 7
    v_readfirstlane_b32 s3, v5
    s_lshl_b32 s10, s10, 3
    s_lshr_b32 s11, s2, 5
    s_add_u32 s10, s10, s11
    s_bfe_u32 s11, s2, 0x20003
    s_mul_i32 s11, s11, 9
    s_add_u32 s11, s11, s3
    s_lshr_b32 s24, s10, 1
    s_mul_i32 s24, s24, 73728
    s_lshl_b32 s25, s11, 11
    s_add_u32 s24, s24, s25
    s_and_b32 s25, s10, 1
    s_lshl_b32 s25, s25, 10
    s_add_u32 s24, s24, s25
    s_add_u32 s24, s24, {WS_PP}
    v_lshlrev_b32 v2, 4, v1
    v_lshrrev_b32 v3, 2, v1
    v_and_b32 v4, 3, v1
    v_lshlrev_b32 v6, 12, v3
    v_lshl_add_u32 v6, v4, 4, v6
    s_lshl_b32 s25, s11, 16
    s_lshl_b32 s26, s10, 6
    s_add_u32 s25, s25, s26
    s_add_u32 s25, s25, {WS_YT}
    v_and_b32 v7, 31, v1
    v_mul_u32_u24 v7, 1152, v7
    v_lshrrev_b32 v8, 5, v1
    v_lshl_add_u32 v7, v8, 4, v7
    s_mul_i32 s26, s10, {32*1152}
    s_lshl_b32 s27, s11, 5
    s_add_u32 s26, s26, s27
    s_waitcnt lgkmcnt(0)""")
    srd(a, 12, 4, 2359296); srd(a, 16, 6, 2359296); srd(a, 20, 8, 0x10000000)
    a.vmem("buffer_load_dwordx4 v[12:15], v6, s[20:23], s25 offen", "y")
    a.vmem("buffer_load_dwordx4 v[16:19], v7, s[12:15], s26 offen", "x")
    for s in range(8):
        a.vmem(f"buffer_load_dwordx4 v[{20+4*s}:{23+4*s}], v2, s[20:23], s24 offen", ("p", s))
        if s < 7: a(f"s_add_u32 s24, s24, {32*73728}")
    a(f"""s_lshl_b32 s27, s3, 10
    v_add_u32 v9, s27, v2
    v_bfe_u32 v10, v1, 2, 2
    v_lshl_add_u32 v10, v8, 3, v10
    v_lshlrev_b32 v10, 6, v10
    v_bfe_u32 v11, v1, 4, 1
    v_lshl_add_u32 v10, v11, 5, v10
    v_lshl_add_u32 v10, v4, 3, v10
    v_add_u32 v10, s27, v10""")
    a.wait(vm="y")
    a.lds("ds_write_b128 v9, v[12:15]", "w")
    a.lds("ds_read_b64_tr_b16 v[12:13], v10", "r")
    a.lds("ds_read_b64_tr_b16 v[14:15], v10 offset:256", "r")
    a.wait(vm="x")
    S = 52
    for j in range(4):
        a(f"v_lshlrev_b32 v{S+2*j}, 16, v{16+j}\nv_and_b32 v{S+2*j+1}, 0xffff0000, v{16+j}")
    def acc(r):
        for j in range(4):
            a(f"v_lshlrev_b32 v60, 16, v{r+j}\nv_and_b32 v61, 0xffff0000, v{r+j}\nv_add_f32 v{S+2*j}, v{S+2*j}, v60\nv_add_f32 v{S+2*j+1}, v{S+2*j+1}, v61")
    a.wait(lg="r"); acc(12)
    for s in range(8):
        a.wait(vm=("p", s)); acc(20 + 4*s)
    for j in range(4): a(f"v_cvt_pk_bf16_f32 v{16+j}, v{S+2*j}, v{S+2*j+1}")
    a.vmem("buffer_store_dwordx4 v[16:19], v7, s[16:19], s26 offen", "o")
    a(f"{name}_end:\ns_endpgm")
    a.kernel_desc(name, 64)
```

```python
import sys
from g import *
import k1, k2, k3
NAME = "parallel_sum__ssm_conv_s4d__dense_activation_silu__prompt"
def build(path):
    a = Prog()
    k1.gen_k1(a, "ln_kgen_kernel", "ffn_conv_kernel", "code_end")
    k2.gen_k2(a, "ffn_conv_kernel", "ffn_conv_kernel_end")
    k3.gen_k3(a, "reduce_kernel")
    a("code_end:\n.fill 64, 4, 0xbf800000")
    errs = check_hazards(a.l, "all")
    for e in errs[:40]: print(e)
    ref = open(f"cdna_kernels/{NAME}.s.ref").read().split("\n")
    hdr = [l for l in ref if l.startswith(";") and "@launch" not in l and "Override launch" not in l and "grid=ceil" not in l]
    hdr += [f"; @launch kernel=ln_kgen_kernel grid=({k1.NKG+k1.NLN},1,1) block=(256,1,1) lds={k1.K1_LDS}",
            f"; @launch kernel=ffn_conv_kernel grid=(256,1,1) block=(256,1,1) lds={k2.K2_LDS}",
            f"; @launch kernel=reduce_kernel grid=(256,1,1) block=(576,1,1) lds={k3.K3_LDS}"]
    open(path, "w").write(a.text("\n".join(hdr)))
    sz = sizes(a.l)
    print("total code bytes", sum(sz), "hazards", len(errs))
if __name__ == "__main__":
    build(sys.argv[1] if len(sys.argv) > 1 else "full.s")
```
